```python
import torch

def _softmax(x, axis=-1):
    return torch.softmax(x, dim=axis)
def _gelu(x):
    return torch.nn.functional.gelu(x, approximate="tanh")
def _silu(x):
    return torch.nn.functional.silu(x)
def _sigmoid(x):
    return torch.sigmoid(x)
def _layernorm(x, axis=-1, eps=1e-5):
    m = x.mean(dim=axis, keepdim=True)
    v = x.var(dim=axis, keepdim=True, unbiased=False)
    return (x - m) / torch.sqrt(v + eps)
def _scatter_add(tgt, idx, src, axis=0):
    return tgt.clone().index_add_(axis, idx, src)
def _segment_sum(src, seg, n):
    out = torch.zeros((n,) + src.shape[1:], dtype=src.dtype)
    return out.index_add_(0, seg, src)
def _pad(x, pw):
    flat = tuple(v for pair in reversed(pw) for v in pair)
    return torch.nn.functional.pad(x, flat)

kernel_name = 'parallel_sum__ssm_conv_s5__dense_activation_squared_relu__prompt'

def setup_inputs():

    _w = (lambda a: (lambda t: t.to(torch.bfloat16) if t.is_floating_point() else t)(torch.as_tensor(a)))
    def _A_setup():
        B, S, D = 1, 2048, 640
        P = D
        Lambda_re = -0.5 * (lambda _x: torch.exp(torch.as_tensor(_x)))((lambda *s: torch.randn(*s, dtype=torch.bfloat16) * 0.8)(P))
        Lambda_im = (lambda *s: torch.randn(*s, dtype=torch.bfloat16) * 0.8)(P) * 1.0
        B_re = (lambda *s: torch.randn(*s, dtype=torch.bfloat16) * 1.6)(P, D) * (D ** -0.5)
        B_im = (lambda *s: torch.randn(*s, dtype=torch.bfloat16) * 1.6)(P, D) * (D ** -0.5)
        C_re = (lambda *s: torch.randn(*s, dtype=torch.bfloat16) * 1.6)(D, P) * (P ** -0.5)
        C_im = (lambda *s: torch.randn(*s, dtype=torch.bfloat16) * 1.6)(D, P) * (P ** -0.5)
        log_dt = (lambda *s: torch.randn(*s, dtype=torch.bfloat16) * 0.8)(P) * 0.3 - 2.0
        Dskip = (lambda *s: torch.randn(*s, dtype=torch.bfloat16) * 0.8)(D)
        return {
            "x": _w((lambda *s: torch.randn(*s, dtype=torch.bfloat16) * 0.05)(B, S, D)),
            "Lambda_re": _w(Lambda_re),
            "Lambda_im": _w(Lambda_im),
            "B_re": _w(B_re),
            "B_im": _w(B_im),
            "C_re": _w(C_re),
            "C_im": _w(C_im),
            "log_dt": _w(log_dt),
            "Dskip": _w(Dskip),
        }
    _A_in = _A_setup()

    def _B_setup():
        B, S, D, F = 1, 2048, 640, 1728
        return {
            "x": _w((lambda *s: torch.randn(*s, dtype=torch.bfloat16) * 0.05)(B, S, D)),
            "w1": _w((lambda *s: torch.randn(*s, dtype=torch.bfloat16) * 0.05)(D, F)),
            "b1": _w((lambda *s: torch.randn(*s, dtype=torch.bfloat16) * 0.4)(F)),
            "w2": _w((lambda *s: torch.randn(*s, dtype=torch.bfloat16) * 0.05)(F, D)),
            "b2": _w((lambda *s: torch.randn(*s, dtype=torch.bfloat16) * 1.6)(D)),
        }
    _B_in = _B_setup()

    return {
        "A_x": _A_in["x"],
        "A_Lambda_re": _A_in["Lambda_re"],
        "A_Lambda_im": _A_in["Lambda_im"],
        "A_B_re": _A_in["B_re"],
        "A_B_im": _A_in["B_im"],
        "A_C_re": _A_in["C_re"],
        "A_C_im": _A_in["C_im"],
        "A_log_dt": _A_in["log_dt"],
        "A_Dskip": _A_in["Dskip"],
        "B_x": _B_in["x"],
        "B_w1": _B_in["w1"],
        "B_b1": _B_in["b1"],
        "B_w2": _B_in["w2"],
        "B_b2": _B_in["b2"],
    }

def reference(A_x, A_Lambda_re, A_Lambda_im, A_B_re, A_B_im, A_C_re, A_C_im, A_log_dt, A_Dskip, B_x, B_w1, B_b1, B_w2, B_b2):
    def _A_ref(x, Lambda_re, Lambda_im, B_re, B_im, C_re, C_im, log_dt, Dskip):
        Bsz, L, H = x.shape
        Lam = Lambda_re + 1j * Lambda_im
        Bmat = B_re + 1j * B_im
        Cmat = C_re + 1j * C_im
        dt = torch.exp(log_dt)
        Lam_bar = torch.exp(dt * Lam)
        B_bar = ((Lam_bar - 1.0) / Lam)[:, None] * Bmat
        Bu = torch.einsum("bld,pd->blp", x + 0j, B_bar)
        h = torch.zeros_like(Bu[:, 0, :])
        hs = []
        for t in range(L):
            h = Lam_bar[None, :] * h + Bu[:, t, :]
            hs.append(h)
        hseq = torch.stack(hs, 1)
        y = 2.0 * torch.einsum("blp,dp->bld", hseq, Cmat).real + x * Dskip[None, None, :]
        return y

    def _B_ref(x, w1, b1, w2, b2):
        h = torch.einsum("bsd,df->bsf", x, w1) + b1
        zero = torch.zeros_like(h)
        r = torch.where(h > zero, h, zero)
        h = r * r
        out = torch.einsum("bsf,fd->bsd", h, w2) + b2
        return out

    x = A_x
    xn = _layernorm(x, axis=-1)
    return x + _A_ref(xn, A_Lambda_re, A_Lambda_im, A_B_re, A_B_im, A_C_re, A_C_im, A_log_dt, A_Dskip) + _B_ref(xn, B_w1, B_b1, B_w2, B_b2)
```

```python
NAME = "parallel_sum__ssm_conv_s5__dense_activation_squared_relu__prompt"
HEADER = open("cdna_kernels/%s.s.ref" % NAME).read().split("; Override launch")[0]
KA = dict(x=0, lre=8, lim=16, bre=24, bim=32, cre=40, cim=48, logdt=56, dskip=64, bx=72,
          w1=80, b1=88, w2=96, b2=104, out=112, dbg=120, ws=128)
SZ = dict(x=2048*640*2, lre=1280, lim=1280, bre=640*640*2, bim=640*640*2, cre=640*640*2, cim=640*640*2,
          logdt=1280, dskip=1280, w1=640*1728*2, b1=1728*2, w2=1728*640*2, b2=1280, out=2048*640*4,
          dbg=256, ws=268435456)

class Asm:
    def __init__(self):
        self.lines = []
    def __call__(self, s):
        for l in s.strip("\n").split("\n"):
            self.lines.append("    " + l.strip() if not l.strip().endswith(":") else l.strip())
    def raw(self, s):
        self.lines.append(s)
    def text(self):
        return "\n".join(self.lines) + "\n"

def kernel_begin(a, name):
    a.raw(".text")
    a.raw(".globl %s" % name)
    a.raw(".p2align 8")
    a.raw(".type %s,@function" % name)
    a.raw("%s:" % name)

def kernel_desc(a, name, vgpr, sgpr=102, accum=None, extra=""):
    if accum is None:
        accum = (vgpr + 3) // 4 * 4
    a.raw('.section .rodata,"a"')
    a.raw(".p2align 6")
    a.raw(".amdhsa_kernel %s" % name)
    a.raw("  .amdhsa_next_free_vgpr %d" % vgpr)
    a.raw("  .amdhsa_next_free_sgpr %d" % sgpr)
    a.raw("  .amdhsa_accum_offset %d" % accum)
    a.raw("  .amdhsa_group_segment_fixed_size 0")
    a.raw("  .amdhsa_kernarg_size 136")
    a.raw("  .amdhsa_user_sgpr_count 2")
    a.raw("  .amdhsa_user_sgpr_kernarg_segment_ptr 1")
    a.raw("  .amdhsa_system_sgpr_workgroup_id_x 1")
    if extra:
        a.raw(extra)
    a.raw(".end_amdhsa_kernel")

def srd(a, s, name, size=None, off=0):
    a("s_load_dwordx2 s[%d:%d], s[0:1], %d" % (s, s + 1, KA[name]))

def srd_fix(a, s, name, size=None, off=0):
    if size is None:
        size = SZ[name] - off
    if off:
        a("s_add_u32 s%d, s%d, 0x%x" % (s, s, off))
        a("s_addc_u32 s%d, s%d, 0" % (s + 1, s + 1))
    a("s_mov_b32 s%d, 0x%x" % (s + 2, size))
    a("s_mov_b32 s%d, 0x20000" % (s + 3))
```

```python
import sys
from common import *
MIMIC = int(sys.argv[2]) if len(sys.argv) > 2 else 1
SCALE = float(sys.argv[3]) if len(sys.argv) > 3 else 1.0
import struct
def f2u(x): return struct.unpack("<I", struct.pack("<f", x))[0]
XN, U, HID, H = 0, 8 << 20, 24 << 20, 40 << 20
a = Asm()
a.raw(HEADER.rstrip())
a.raw("; @launch kernel=ln_kernel grid=(2048,1,1) block=(64,1,1) lds=0")
a.raw("; @launch kernel=g1_kernel grid=(96256,1,1) block=(64,1,1) lds=0")
a.raw("; @launch kernel=scan_kernel grid=(10,1,1) block=(64,1,1) lds=0")
a.raw("; @launch kernel=g2_kernel grid=(20480,1,1) block=(64,1,1) lds=0")
a.raw('.amdgcn_target "amdgcn-amd-amdhsa--gfx950"')

def rnd(a, v):
    a("v_cvt_pk_bf16_f32 v%d, v%d, v%d" % (v, v, v))
    a("v_lshlrev_b32 v%d, 16, v%d" % (v, v))

def wave_sum(a, v, t, idx):
    for m in (1, 2, 4, 8, 16, 32):
        a("v_xor_b32 v%d, %d, v0" % (idx, m))
        a("v_lshlrev_b32 v%d, 2, v%d" % (idx, idx))
        a("ds_bpermute_b32 v%d, v%d, v%d" % (t, idx, v))
        a("s_waitcnt lgkmcnt(0)")
        a("v_add_f32 v%d, v%d, v%d" % (v, v, t))

kernel_begin(a, "ln_kernel")
a("s_cmp_ge_u32 s2, 2048\ns_cbranch_scc1 ln_end")
srd(a, 4, "x"); srd(a, 8, "ws")
a("s_waitcnt lgkmcnt(0)")
srd_fix(a, 4, "x"); srd_fix(a, 8, "ws", size=2048*640*4, off=XN)
a("s_mul_i32 s12, s2, 1280\ns_mul_i32 s13, s2, 2560")
a("v_lshlrev_b32 v1, 1, v0\nv_lshlrev_b32 v2, 2, v0")
for j in range(10):
    a("buffer_load_ushort v%d, v1, s[4:7], s12 offen offset:%d" % (10 + j, j * 128))
a("s_waitcnt vmcnt(0)")
a("v_mov_b32 v3, 0")
for j in range(10):
    a("v_lshlrev_b32 v%d, 16, v%d" % (10 + j, 10 + j))
    a("v_add_f32 v3, v3, v%d" % (10 + j))
wave_sum(a, 3, 4, 5)
a("v_mul_f32 v3, 0x%x, v3" % f2u(1.0 / 640))
a("v_mov_b32 v6, 0")
for j in range(10):
    a("v_sub_f32 v7, v%d, v3" % (10 + j))
    a("v_fmac_f32 v6, v7, v7")
wave_sum(a, 6, 4, 5)
a("v_mul_f32 v6, 0x%x, v6" % f2u(1.0 / 640))
rnd(a, 3); rnd(a, 6)
a("v_add_f32 v6, 0x%x, v6" % f2u(1e-5))
rnd(a, 6)
a("v_sqrt_f32 v6, v6\ns_nop 1")
rnd(a, 6)
a("v_rcp_f32 v6, v6\ns_nop 1")
for j in range(10):
    a("v_sub_f32 v%d, v%d, v3" % (10 + j, 10 + j))
    rnd(a, 10 + j)
    a("v_mul_f32 v%d, v%d, v6" % (10 + j, 10 + j))
    rnd(a, 10 + j)
    a("buffer_store_dword v%d, v2, s[8:11], s13 offen offset:%d" % (10 + j, j * 256))
a("ln_end:\ns_endpgm")

kernel_begin(a, "g1_kernel")
a("s_cmp_ge_u32 s2, 96256\ns_cbranch_scc1 g1_end")
a("s_mov_b32 s3, 0x%x\ns_mul_hi_u32 s14, s2, s3" % ((1 << 32) // 47 + 1))
a("s_mul_i32 s15, s14, 47\ns_sub_u32 s15, s2, s15")
srd(a, 20, "bre"); srd(a, 24, "bim"); srd(a, 28, "w1"); srd(a, 32, "ws"); srd(a, 36, "b1"); srd(a, 40, "ws"); srd(a, 44, "ws")
a("s_waitcnt lgkmcnt(0)")
srd_fix(a, 20, "bre"); srd_fix(a, 24, "bim"); srd_fix(a, 28, "w1"); srd_fix(a, 36, "b1")
srd_fix(a, 40, "ws", size=2048*1280*4, off=U); srd_fix(a, 44, "ws", size=2048*1728*4, off=HID)
a("s_mul_i32 s16, s14, 2560\ns_add_u32 s32, s32, s16\ns_addc_u32 s33, s33, 0")
a("v_mov_b32 v3, 0\ns_mov_b32 s17, 0")
a("s_cmp_ge_u32 s15, 20\ns_cbranch_scc1 g1_ffn")
a("s_cmp_ge_u32 s15, 10\ns_cbranch_scc0 g1_re")
a("s_mov_b32 s20, s24\ns_mov_b32 s21, s25")
a("g1_re:")
a("s_cmp_ge_u32 s15, 10\ns_cselect_b32 s18, 10, 0\ns_sub_u32 s18, s15, s18\ns_lshl_b32 s18, s18, 6")
a("v_add_u32 v1, s18, v0\nv_mul_u32_u24 v1, 1280, v1")
a("g1_l1:")
a("s_load_dwordx8 s[48:55], s[32:33], 0")
for j in range(8):
    a("buffer_load_ushort v%d, v1, s[20:23], s17 offen offset:%d" % (10 + j, 2 * j))
a("s_waitcnt vmcnt(0) lgkmcnt(0)")
for j in range(8):
    a("v_lshlrev_b32 v%d, 16, v%d\nv_fmac_f32 v3, s%d, v%d" % (10 + j, 10 + j, 48 + j, 10 + j))
a("s_add_u32 s32, s32, 32\ns_addc_u32 s33, s33, 0\ns_add_u32 s17, s17, 16\ns_cmp_lt_u32 s17, 1280\ns_cbranch_scc1 g1_l1")
a("s_lshl_b32 s18, s15, 8\ns_mul_i32 s19, s14, 5120\ns_add_u32 s18, s18, s19\nv_lshlrev_b32 v2, 2, v0")
a("buffer_store_dword v3, v2, s[40:43], s18 offen")
a("s_endpgm")
a("g1_ffn:")
a("s_sub_u32 s15, s15, 20\ns_lshl_b32 s18, s15, 6\nv_add_u32 v1, s18, v0\nv_lshlrev_b32 v1, 1, v1")
a("buffer_load_ushort v4, v1, s[36:39], 0 offen")
for j in range(8):
    a("v_add_u32 v%d, %d, v1" % (20 + j, 3456 * j))
a("g1_l2:")
a("s_load_dwordx8 s[48:55], s[32:33], 0")
for j in range(8):
    a("buffer_load_ushort v%d, v%d, s[28:31], s17 offen" % (10 + j, 20 + j))
a("s_waitcnt vmcnt(0) lgkmcnt(0)")
for j in range(8):
    a("v_lshlrev_b32 v%d, 16, v%d\nv_fmac_f32 v3, s%d, v%d" % (10 + j, 10 + j, 48 + j, 10 + j))
a("s_add_u32 s32, s32, 32\ns_addc_u32 s33, s33, 0\ns_add_u32 s17, s17, %d\ns_cmp_lt_u32 s17, %d\ns_cbranch_scc1 g1_l2" % (3456 * 8, 3456 * 640))
a("v_lshlrev_b32 v4, 16, v4")
if MIMIC: rnd(a, 3)
a("v_add_f32 v3, v3, v4")
if MIMIC: rnd(a, 3)
a("v_max_f32 v3, 0, v3\nv_mul_f32 v3, v3, v3")
rnd(a, 3)
a("s_lshl_b32 s18, s15, 8\ns_mul_i32 s19, s14, %d\ns_add_u32 s18, s18, s19\nv_lshlrev_b32 v2, 2, v0" % (1728 * 4))
a("buffer_store_dword v3, v2, s[44:47], s18 offen")
a("g1_end:\ns_endpgm")

kernel_begin(a, "scan_kernel")
a("s_cmp_ge_u32 s2, 10\ns_cbranch_scc1 sc_end")
srd(a, 4, "lre"); srd(a, 8, "lim"); srd(a, 12, "logdt"); srd(a, 16, "ws"); srd(a, 20, "ws")
a("s_waitcnt lgkmcnt(0)")
srd_fix(a, 4, "lre"); srd_fix(a, 8, "lim"); srd_fix(a, 12, "logdt")
srd_fix(a, 16, "ws", size=2048*1280*4, off=U); srd_fix(a, 20, "ws", size=2048*1280*4, off=H)
a("s_lshl_b32 s3, s2, 6\nv_add_u32 v1, s3, v0\nv_lshlrev_b32 v2, 2, v1\nv_lshlrev_b32 v1, 1, v1")
a("buffer_load_ushort v3, v1, s[4:7], 0 offen\nbuffer_load_ushort v4, v1, s[8:11], 0 offen\nbuffer_load_ushort v5, v1, s[12:15], 0 offen")
a("s_waitcnt vmcnt(0)")
a("v_lshlrev_b32 v3, 16, v3\nv_lshlrev_b32 v4, 16, v4\nv_lshlrev_b32 v5, 16, v5")
a("v_mul_f32 v5, 0x3fb8aa3b, v5\nv_exp_f32 v5, v5\ns_nop 1")
rnd(a, 5)
a("v_mul_f32 v6, v5, v3\nv_mul_f32 v7, v5, v4")
a("v_mul_f32 v6, 0x3fb8aa3b, v6\nv_exp_f32 v6, v6")
a("v_mul_f32 v7, 0.15915494, v7\nv_fract_f32 v7, v7\nv_cos_f32 v8, v7\nv_sin_f32 v9, v7\ns_nop 1")
a("v_mul_f32 v8, v6, v8\nv_mul_f32 v9, v6, v9")
a("v_add_f32 v10, -1.0, v8")
a("v_mul_f32 v11, v3, v3\nv_fmac_f32 v11, v4, v4\nv_rcp_f32 v11, v11\ns_nop 1")
a("v_mul_f32 v12, v10, v3\nv_fmac_f32 v12, v9, v4\nv_mul_f32 v12, v12, v11")
a("v_mul_f32 v13, v9, v3\nv_fma_f32 v13, -v10, v4, v13\nv_mul_f32 v13, v13, v11")
a("v_mov_b32 v14, 0\nv_mov_b32 v15, 0\ns_mov_b32 s24, 0")
a("sc_l:")
a("buffer_load_dword v16, v2, s[16:19], s24 offen\nbuffer_load_dword v17, v2, s[16:19], s24 offen offset:2560")
a("s_waitcnt vmcnt(0)")
a("v_mul_f32 v18, v12, v16\nv_fma_f32 v18, -v13, v17, v18\nv_mul_f32 v19, v12, v17\nv_fmac_f32 v19, v13, v16")
a("v_fmac_f32 v18, v8, v14\nv_fma_f32 v18, -v9, v15, v18\nv_fmac_f32 v19, v8, v15\nv_fmac_f32 v19, v9, v14")
a("v_mov_b32 v14, v18\nv_mov_b32 v15, v19")
rnd(a, 18); rnd(a, 19)
a("buffer_store_dword v18, v2, s[20:23], s24 offen\nbuffer_store_dword v19, v2, s[20:23], s24 offen offset:2560")
a("s_add_u32 s24, s24, 5120\ns_cmp_lt_u32 s24, %d\ns_cbranch_scc1 sc_l" % (2048 * 5120))
a("sc_end:\ns_endpgm")

kernel_begin(a, "g2_kernel")
a("s_cmp_ge_u32 s2, 20480\ns_cbranch_scc1 g2_end")
a("s_mov_b32 s3, 0x%x\ns_mul_hi_u32 s14, s2, s3" % ((1 << 32) // 10 + 1))
a("s_mul_i32 s15, s14, 10\ns_sub_u32 s15, s2, s15")
srd(a, 20, "cre"); srd(a, 24, "cim"); srd(a, 28, "w2"); srd(a, 32, "ws"); srd(a, 34, "ws"); srd(a, 36, "b2"); srd(a, 40, "dskip")
srd(a, 44, "out"); srd(a, 64, "x"); srd(a, 68, "ws")
a("s_waitcnt lgkmcnt(0)")
srd_fix(a, 20, "cre"); srd_fix(a, 24, "cim"); srd_fix(a, 28, "w2"); srd_fix(a, 36, "b2"); srd_fix(a, 40, "dskip"); srd_fix(a, 44, "out")
srd_fix(a, 64, "x"); srd_fix(a, 68, "ws", size=2048*640*4, off=XN)
a("s_mul_i32 s16, s14, 5120\ns_add_u32 s16, s16, 0x%x\ns_add_u32 s32, s32, s16\ns_addc_u32 s33, s33, 0" % H)
a("s_mul_i32 s16, s14, %d\ns_add_u32 s16, s16, 0x%x\ns_add_u32 s34, s34, s16\ns_addc_u32 s35, s35, 0" % (1728 * 4, HID))
a("s_lshl_b32 s18, s15, 6\nv_add_u32 v2, s18, v0\nv_mul_u32_u24 v1, 1280, v2\nv_lshlrev_b32 v5, 1, v2\nv_lshlrev_b32 v6, 2, v2")
a("v_mov_b32 v3, 0\nv_mov_b32 v4, 0\ns_mov_b32 s17, 0")
a("g2_l1:")
a("s_load_dwordx8 s[48:55], s[32:33], 0\ns_load_dwordx8 s[56:63], s[32:33], 2560")
for j in range(8):
    a("buffer_load_ushort v%d, v1, s[20:23], s17 offen offset:%d" % (10 + j, 2 * j))
    a("buffer_load_ushort v%d, v1, s[24:27], s17 offen offset:%d" % (18 + j, 2 * j))
a("s_waitcnt vmcnt(0) lgkmcnt(0)")
for j in range(8):
    a("v_lshlrev_b32 v%d, 16, v%d\nv_fmac_f32 v3, s%d, v%d" % (10 + j, 10 + j, 48 + j, 10 + j))
    a("v_lshlrev_b32 v%d, 16, v%d\nv_fma_f32 v3, -s%d, v%d, v3" % (18 + j, 18 + j, 56 + j, 18 + j))
a("s_add_u32 s32, s32, 32\ns_addc_u32 s33, s33, 0\ns_add_u32 s17, s17, 16\ns_cmp_lt_u32 s17, 1280\ns_cbranch_scc1 g2_l1")
a("s_mov_b32 s17, 0")
for j in range(8):
    a("v_add_u32 v%d, %d, v5" % (30 + j, 1280 * j))
a("g2_l2:")
a("s_load_dwordx8 s[48:55], s[34:35], 0")
for j in range(8):
    a("buffer_load_ushort v%d, v%d, s[28:31], s17 offen" % (10 + j, 30 + j))
a("s_waitcnt vmcnt(0) lgkmcnt(0)")
for j in range(8):
    a("v_lshlrev_b32 v%d, 16, v%d\nv_fmac_f32 v4, s%d, v%d" % (10 + j, 10 + j, 48 + j, 10 + j))
a("s_add_u32 s34, s34, 32\ns_addc_u32 s35, s35, 0\ns_add_u32 s17, s17, %d\ns_cmp_lt_u32 s17, %d\ns_cbranch_scc1 g2_l2" % (1280 * 8, 1280 * 1728))
a("s_mul_i32 s18, s14, 1280\ns_mul_i32 s19, s14, 2560")
a("buffer_load_ushort v10, v5, s[36:39], 0 offen\nbuffer_load_ushort v11, v5, s[40:43], 0 offen\nbuffer_load_ushort v12, v5, s[64:67], s18 offen\nbuffer_load_dword v13, v6, s[68:71], s19 offen")
a("s_waitcnt vmcnt(0)")
a("v_lshlrev_b32 v10, 16, v10\nv_lshlrev_b32 v11, 16, v11\nv_lshlrev_b32 v12, 16, v12")
if MIMIC: rnd(a, 4)
a("v_add_f32 v4, v4, v10")
if MIMIC: rnd(a, 4)
a("v_mul_f32 v13, v13, v11")
if MIMIC: rnd(a, 13)
a("v_fma_f32 v3, 2.0, v3, v13\nv_add_f32 v3, v3, v12\nv_add_f32 v3, v3, v4")
if SCALE != 1.0:
    a("v_mul_f32 v3, 0x%x, v3" % f2u(SCALE))
a("buffer_store_dword v3, v6, s[44:47], s19 offen")
a("g2_end:\ns_endpgm")
for k in ("ln_kernel", "g1_kernel", "scan_kernel", "g2_kernel"):
    kernel_desc(a, k, 40, 80)
open(sys.argv[1], "w").write(a.text())
```
